```python
import torch

def _softmax(x, axis=-1):
    return torch.softmax(x, dim=axis)
def _gelu(x):
    return torch.nn.functional.gelu(x, approximate="tanh")
def _silu(x):
    return torch.nn.functional.silu(x)
def _sigmoid(x):
    return torch.sigmoid(x)
def _layernorm(x, axis=-1, eps=1e-5):
    m = x.mean(dim=axis, keepdim=True)
    v = x.var(dim=axis, keepdim=True, unbiased=False)
    return (x - m) / torch.sqrt(v + eps)
def _scatter_add(tgt, idx, src, axis=0):
    return tgt.clone().index_add_(axis, idx, src)
def _segment_sum(src, seg, n):
    out = torch.zeros((n,) + src.shape[1:], dtype=src.dtype)
    return out.index_add_(0, seg, src)
def _pad(x, pw):
    flat = tuple(v for pair in reversed(pw) for v in pair)
    return torch.nn.functional.pad(x, flat)

kernel_name = 'concat_heads__sliding_local_dilated__grouped_kv_mqa__prompt'

def setup_inputs():

    _w = (lambda a: (lambda t: t.to(torch.bfloat16) if t.is_floating_point() else t)(torch.as_tensor(a)))
    def _A_setup():
        B, S, D = 1, 2048, 512
        return {
            "x": _w((lambda *s: torch.randn(*s, dtype=torch.bfloat16) * 0.1)(B, S, D)),
            "wqkv": _w((lambda *s: torch.randn(*s, dtype=torch.bfloat16) * 0.8)(D, 3 * D)),
            "wo": _w((lambda *s: torch.randn(*s, dtype=torch.bfloat16) * 0.8)(D, D)),
        }
    _A_in = _A_setup()

    def _B_setup():
        B, S, D, H = 1, 2048, 512, 32
        Dh = D // H
        return {
            "x": _w((lambda *s: torch.randn(*s, dtype=torch.bfloat16) * 0.05)(B, S, D)),
            "wq": _w((lambda *s: torch.randn(*s, dtype=torch.bfloat16) * 3.2)(D, H * Dh)),
            "wk": _w((lambda *s: torch.randn(*s, dtype=torch.bfloat16) * 3.2)(D, Dh)),
            "wv": _w((lambda *s: torch.randn(*s, dtype=torch.bfloat16) * 1.6)(D, Dh)),
            "wo": _w((lambda *s: torch.randn(*s, dtype=torch.bfloat16) * 1.6)(H * Dh, D)),
        }
    _B_in = _B_setup()

    return {
        "A_x": _A_in["x"],
        "A_wqkv": _A_in["wqkv"],
        "A_wo": _A_in["wo"],
        "B_x": _B_in["x"],
        "B_wq": _B_in["wq"],
        "B_wk": _B_in["wk"],
        "B_wv": _B_in["wv"],
        "B_wo": _B_in["wo"],
    }

def reference(A_x, A_wqkv, A_wo, B_x, B_wq, B_wk, B_wv, B_wo):
    def _A_ref(x, wqkv, wo):
        B, S, D = x.shape
        H = 32; Dh = D // H
        W, dil = 8, 2
        qkv = (lambda x, *d: x.permute(*d))((x @ wqkv).reshape(B, S, 3, H, Dh), 2, 0, 3, 1, 4)
        q, k, v = qkv[0], qkv[1], qkv[2]
        scale = Dh ** -0.5
        pos = torch.arange(S)
        off = torch.arange(W) * dil
        idx = pos[:, None] - off[None, :]
        mask = idx >= 0
        idx_c = torch.where(mask, idx, 0).reshape(-1)
        kg = k[:, :, idx_c, :].reshape(B, H, S, W, Dh)
        vg = v[:, :, idx_c, :].reshape(B, H, S, W, Dh)
        logits = torch.einsum("bhsd,bhswd->bhsw", q, kg) * scale
        logits = torch.where(mask[None, None, :, :], logits, -1e9)
        attn = _softmax(logits, axis=-1)
        o = torch.einsum("bhsw,bhswd->bhsd", attn, vg)
        return (lambda x, *d: x.permute(*d))(o, 0, 2, 1, 3).reshape(B, S, D) @ wo

    def _B_ref(x, wq, wk, wv, wo):
        B, S, D = x.shape
        H = 32
        Dh = D // H
        q = (lambda x, *d: x.permute(*d))((x @ wq).reshape(B, S, H, Dh), 0, 2, 1, 3)
        k = x @ wk
        v = x @ wv
        scores = torch.einsum("bhqd,bkd->bhqk", q, k) * (Dh ** -0.5)
        p = _softmax(scores, axis=-1)
        o = torch.einsum("bhqk,bkd->bhqd", p, v)
        return (lambda x, *d: x.permute(*d))(o, 0, 2, 1, 3).reshape(B, S, H * Dh) @ wo

    a = _A_ref(A_x, A_wqkv, A_wo)
    b = _B_ref(B_x, B_wq, B_wk, B_wv, B_wo)
    return torch.concatenate([a, b], axis=-1)
```

```python
import re

REG_RE = re.compile(r'^(-|\|)?(abs\()?([vsa])(\d+|\[(\d+):(\d+)\])\)?\|?$')

def parse_reg(tok):
    tok = tok.strip()
    if tok in ('vcc',): return [('s', 106), ('s', 107)]
    if tok == 'vcc_lo': return [('s', 106)]
    if tok == 'vcc_hi': return [('s', 107)]
    if tok == 'exec': return [('s', 126), ('s', 127)]
    if tok == 'exec_lo': return [('s', 126)]
    if tok == 'exec_hi': return [('s', 127)]
    if tok == 'm0': return [('s', 124)]
    m = REG_RE.match(tok)
    if not m: return []
    k = m.group(3)
    if m.group(5) is not None:
        return [(k, i) for i in range(int(m.group(5)), int(m.group(6)) + 1)]
    return [(k, int(m.group(4)))]

TRANS = ('v_exp_f32', 'v_log_f32', 'v_rcp_f32', 'v_rsq_f32', 'v_sqrt_f32', 'v_sin_f32', 'v_cos_f32', 'v_rcp_iflag_f32', 'v_exp_f16')

class Ins:
    __slots__ = ('text', 'mn', 'ops', 'mods', 'rd', 'wr', 'kind', 'srcA', 'srcB', 'srcC', 'passes', 'label', 'target', 'lds_dma', 'wide_store', 'data')
    def __init__(self, text):
        self.text = text
        t = text.split(';')[0].strip()
        self.label = None; self.target = None
        self.rd = set(); self.wr = set(); self.kind = 'other'
        self.srcA = self.srcB = self.srcC = (); self.passes = 0
        self.lds_dma = False; self.wide_store = False; self.data = ()
        self.mn = ''; self.ops = []; self.mods = []
        if not t: self.kind = 'blank'; return
        if t.endswith(':'):
            self.label = t[:-1]; self.kind = 'label'; return
        if t.startswith('.'):
            self.kind = 'directive'; return
        parts = t.split(None, 1)
        mn = parts[0]; self.mn = mn
        rest = parts[1] if len(parts) > 1 else ''
        ops = [o.strip() for o in rest.split(',')] if rest else []
        mods = []
        joined = []; depth = 0; cur = ''
        for o in ops:
            if depth > 0:
                cur += ',' + o
            else:
                cur = o
            depth = cur.count('[') - cur.count(']') + cur.count('(') - cur.count(')')
            if depth == 0:
                joined.append(cur)
        ops = joined
        if ops:
            last = ops[-1].split()
            ops[-1] = last[0]; mods = last[1:]
        self.ops = ops; self.mods = mods
        R = lambda i: parse_reg(ops[i]) if i < len(ops) else []
        base = mn
        for suf in ('_e32', '_e64', '_dpp', '_sdwa'):
            if base.endswith(suf): base = base[:-len(suf)]
        EXEC = [('s', 126), ('s', 127)]
        if base.startswith('v_mfma'):
            self.kind = 'mfma'
            self.wr.update(R(0)); self.srcA = tuple(R(1)); self.srcB = tuple(R(2)); self.srcC = tuple(R(3))
            self.rd.update(R(1) + R(2) + R(3))
            self.passes = 8 if '32x32x16' in base else 4 if '16x16x32' in base else None
            assert self.passes, text
        elif base.startswith('v_cmp'):
            self.kind = 'valu'
            self.wr.update(R(0)); self.rd.update(R(1) + R(2))
            assert not base.startswith('v_cmpx')
        elif base in ('v_readfirstlane_b32', 'v_readlane_b32'):
            self.kind = 'valu'; self.wr.update(R(0)); self.rd.update(R(1) + R(2))
        elif base.startswith('v_permlane') or base == 'v_swap_b32':
            self.kind = 'valu'; self.wr.update(R(0) + R(1)); self.rd.update(R(0) + R(1))
        elif base in ('v_add_co_u32', 'v_sub_co_u32', 'v_addc_co_u32', 'v_subb_co_u32'):
            self.kind = 'valu'; self.wr.update(R(0) + R(1))
            for i in range(2, len(ops)): self.rd.update(R(i))
        elif base.startswith('v_'):
            self.kind = 'trans' if base in TRANS else 'valu'
            self.wr.update(R(0))
            for i in range(1, len(ops)): self.rd.update(R(i))
            if base.startswith('v_fmac') or base.startswith('v_pk_fmac') or base.startswith('v_dot2c') or base == 'v_writelane_b32':
                self.rd.update(R(0))
            if mn.endswith('_dpp') or any(m.startswith(('row_', 'quad_perm', 'wave_')) for m in mods):
                self.kind = 'dpp'
                self.rd.update(R(0))
        elif base.startswith('ds_'):
            self.kind = 'lds'
            if base.startswith('ds_read') or base.startswith('ds_bpermute') or base.startswith('ds_permute') or base.startswith('ds_swizzle') or '_rtn' in base:
                self.wr.update(R(0))
                for i in range(1, len(ops)): self.rd.update(R(i))
            else:
                for i in range(0, len(ops)): self.rd.update(R(i))
        elif base.startswith('buffer_'):
            self.kind = 'vmem'
            if base in ('buffer_wbl2', 'buffer_inv'):
                pass
            elif 'lds' in mods:
                self.lds_dma = True
                for i in range(len(ops)): self.rd.update(R(i))
                self.rd.add(('s', 124))
            elif base.startswith('buffer_load'):
                self.wr.update(R(0))
                for i in range(1, len(ops)): self.rd.update(R(i))
            else:
                for i in range(len(ops)): self.rd.update(R(i))
                self.data = tuple(R(0))
                if base.endswith('x4') or base.endswith('x3'): self.wide_store = True
                if 'atomic' in base and 'sc0' in mods: self.wr.update(R(0))
        elif base.startswith('global_'):
            self.kind = 'vmem'
            if base.startswith('global_load_lds'):
                self.lds_dma = True
                for i in range(len(ops)): self.rd.update(R(i))
                self.rd.add(('s', 124))
            elif base.startswith('global_load'):
                self.wr.update(R(0))
                for i in range(1, len(ops)): self.rd.update(R(i))
            elif 'atomic' in base and 'sc0' in mods:
                self.wr.update(R(0))
                for i in range(1, len(ops)): self.rd.update(R(i))
            else:
                for i in range(len(ops)): self.rd.update(R(i))
                self.data = tuple(R(1))
                if base.endswith('x4') or base.endswith('x3'): self.wide_store = True
        elif base.startswith('s_load') or base.startswith('s_buffer_load') or base in ('s_memtime', 's_memrealtime'):
            self.kind = 'smem'; self.wr.update(R(0))
            for i in range(1, len(ops)): self.rd.update(R(i))
        elif base in ('s_waitcnt',):
            self.kind = 'wait'
        elif base == 's_nop':
            self.kind = 'nop'
        elif base == 's_barrier':
            self.kind = 'barrier'
        elif base.startswith('s_cbranch') or base == 's_branch':
            self.kind = 'branch'; self.target = ops[0]
        elif base in ('s_endpgm',):
            self.kind = 'end'
        elif base.startswith('s_cmp') or base.startswith('s_bitcmp') or base in ('s_setprio', 's_sleep', 's_setreg_b32', 's_setreg_imm32_b32'):
            self.kind = 'salu'
            for i in range(len(ops)): self.rd.update(R(i))
        elif base.startswith('s_'):
            self.kind = 'salu'; self.wr.update(R(0))
            for i in range(1, len(ops)): self.rd.update(R(i))
            if 'saveexec' in base: self.wr.update(EXEC); self.rd.update(EXEC)
            if base in ('s_addk_i32', 's_mulk_i32'): self.rd.update(R(0))
        else:
            raise ValueError('unknown instr: ' + text)
    def states(self):
        if self.kind in ('label', 'blank', 'directive'): return 0
        if self.kind == 'nop': return int(self.ops[0], 0) + 1
        return 1
    def is_valu(self): return self.kind in ('valu', 'trans', 'dpp')


def parse_wait(ins):
    t = ins.text.split(';')[0]
    vm = re.search(r'vmcnt\((\d+)\)', t); lg = re.search(r'lgkmcnt\((\d+)\)', t)
    return (int(vm.group(1)) if vm else None, int(lg.group(1)) if lg else None)


def need_states(p, c):
    n = 0
    vw = {r for r in p.wr if r[0] in 'va'}
    sw = {r for r in p.wr if r[0] == 's'}
    if p.is_valu():
        if c.kind == 'mfma' and vw & c.rd: n = max(n, 2)
        if p.kind == 'trans' and c.kind in ('valu', 'dpp') and vw & c.rd: n = max(n, 1)
        if p.kind == 'trans' and c.kind in ('lds', 'vmem') and vw & c.rd: n = max(n, 1)
        if c.mn.startswith('v_permlane') and vw & c.rd: n = max(n, 2)
        if c.kind == 'dpp' and vw & c.rd: n = max(n, 2)
        if c.mn.startswith(('v_readfirstlane', 'v_readlane')) and vw & c.rd: n = max(n, 1)
        if sw:
            if c.is_valu() and (sw & c.rd): n = max(n, 2)
            if c.mn.startswith('v_cndmask') and len(c.ops) == 3 and (('s', 106) in sw): n = max(n, 2)
            if c.kind == 'vmem' and sw & c.rd: n = max(n, 5)
            if c.mn.startswith(('v_readlane', 'v_writelane')) and sw & c.rd: n = max(n, 4)
            if c.kind in ('salu', 'branch', 'smem') and sw & c.rd: n = max(n, 1)
            if c.kind == 'branch' and 'vcc' in c.mn and (('s', 106) in sw): n = max(n, 5)
    if p.kind == 'mfma':
        D = set(p.wr); ps = p.passes
        big = 12 if ps == 8 else 8
        if c.kind == 'mfma':
            if D & (set(c.srcA) | set(c.srcB)): n = max(n, big)
            if D & set(c.srcC):
                if tuple(sorted(D)) == tuple(sorted(c.srcC)) and c.passes == ps: pass
                else: n = max(n, 10 if ps == 8 else 6)
            elif D & c.wr:
                n = max(n, big)
        elif c.is_valu() or c.kind in ('lds', 'vmem'):
            if D & (c.rd | c.wr): n = max(n, big)
        if c.is_valu() and set(p.srcC) & c.wr: n = max(n, 7 if ps == 8 else 3)
        if c.kind in ('lds', 'vmem') and set(p.srcC) & c.wr: n = max(n, 7 if ps == 8 else 3)
    if p.kind == 'salu' and ('s', 124) in p.wr and (c.lds_dma or c.mn.startswith('s_sendmsg')): n = max(n, 1)
    if p.wide_store and set(p.data) & c.wr: n = max(n, 2)
    return n


class Asm:
    def __init__(self):
        self.ins = []
    def __call__(self, text):
        for line in text.split('\n'):
            if line.strip():
                self.ins.append(Ins('  ' + line.strip() if not line.strip().endswith(':') else line.strip()))
    def label(self, name): self.ins.append(Ins(name + ':'))
    def comment(self, c): self.ins.append(Ins('  ; ' + c))
    def text(self): return '\n'.join(i.text for i in self.ins) + '\n'

    def trace(self, start=0, taken=(), loops=2):
        labels = {i.label: k for k, i in enumerate(self.ins) if i.label}
        cnt = {}
        tr = []; k = start
        while k < len(self.ins):
            i = self.ins[k]; tr.append(k)
            if i.kind == 'end': break
            if i.kind == 'branch':
                t = labels[i.target]
                if i.mn == 's_branch':
                    if t <= k:
                        cnt[k] = cnt.get(k, 0) + 1
                        if cnt[k] > loops: break
                    k = t; continue
                if t <= k:
                    cnt[k] = cnt.get(k, 0) + 1
                    if cnt[k] < loops: k = t; continue
                    cnt[k] = 0
                elif i.target in taken:
                    k = t; continue
            k += 1
            if len(tr) > 2000000: raise RuntimeError('trace too long')
        return tr

    def fix_hazards(self, start=0, taken=(), verbose=False):
        total = 0
        while True:
            tr = self.trace(start, taken)
            fix = None
            win = []
            for k in tr:
                c = self.ins[k]
                if c.states() == 0: continue
                need = 0
                dist = 0
                for p in reversed(win):
                    r = need_states(p, c)
                    if r > dist: need = max(need, r - dist)
                    dist += p.states()
                    if dist >= 20: break
                if need:
                    fix = (k, need); break
                win.append(c)
                if len(win) > 24: win.pop(0)
            if not fix: break
            k, need = fix
            if verbose: print('hazard pad', need, 'before', self.ins[k].text)
            self.ins.insert(k, Ins('  s_nop %d ; hz' % (need - 1)))
            total += need
        return total

    def check_waits(self, start=0, taken=(), auto=False):
        while True:
            tr = self.trace(start, taken)
            vm = []
            lg = []
            err = None
            for k in tr:
                c = self.ins[k]
                if c.kind == 'wait':
                    v, l = parse_wait(c)
                    if v is not None:
                        while len(vm) > v: vm.pop(0)
                    if l is not None:
                        if any(x[1] == 'smem' for x in lg):
                            if l == 0: lg = []
                        else:
                            while len(lg) > l: lg.pop(0)
                    continue
                use = c.rd | c.wr
                nv = None
                for j, d in enumerate(vm):
                    if d & use: nv = len(vm) - j - 1
                nl = None
                for j, (d, kd) in enumerate(lg):
                    if d & use:
                        if c.kind == 'lds' and kd == 'lds' and not (d & c.rd): continue
                        nl = len(lg) - j - 1
                        if any(x[1] == 'smem' for x in lg): nl = 0
                if c.kind == 'vmem' and nv is not None:
                    if not any(d & c.rd for d in vm): nv = None
                if nv is not None or nl is not None:
                    err = (k, nv, nl); break
                if c.kind == 'vmem':
                    vm.append(set(r for r in c.wr))
                    if len(vm) > 63: raise RuntimeError('vmcnt overflow at ' + c.text)
                elif c.kind == 'lds': lg.append((set(c.wr), 'lds'))
                elif c.kind == 'smem': lg.append((set(c.wr), 'smem'))
            if not err: return
            k, nv, nl = err
            if not auto:
                raise RuntimeError('missing wait before [%d] %s : vm %s lgkm %s' % (k, self.ins[k].text, nv, nl))
            w = []
            if nv is not None: w.append('vmcnt(%d)' % nv)
            if nl is not None: w.append('lgkmcnt(%d)' % min(nl, 15))
            self.ins.insert(k, Ins('  s_waitcnt ' + ' '.join(w) + ' ; auto'))


def kd(name, vgpr, sgpr=96, accum=None, wg_y=False):
    accum = accum if accum is not None else (vgpr + 3) // 4 * 4
    return f""".section .rodata,"a"
.p2align 6
.amdhsa_kernel {name}
  .amdhsa_next_free_vgpr {vgpr}
  .amdhsa_next_free_sgpr {sgpr}
  .amdhsa_accum_offset {accum}
  .amdhsa_group_segment_fixed_size 0
  .amdhsa_kernarg_size 88
  .amdhsa_user_sgpr_count 2
  .amdhsa_user_sgpr_kernarg_segment_ptr 1
  .amdhsa_system_sgpr_workgroup_id_x 1
.end_amdhsa_kernel
"""

def khead(name):
    return f""".text
.globl {name}
.p2align 8
.type {name},@function
{name}:
"""
```

```python
import sys
from asmlib import *
NAME = 'concat_heads__sliding_local_dilated__grouped_kv_mqa__prompt'
WS_KV = 0
WS_OA = 1 << 20
WS_OB = 3 << 20
CEXP = 0.25 * 1.4426950408889634
import struct
def f2u(x): return '0x%08x' % struct.unpack('<I', struct.pack('<f', x))[0]

def srd(a, R, lo, hi, nbytes, off=0):
    if off:
        a(f's_add_u32 s{R}, s{lo}, {off}')
        a(f's_addc_u32 s{R+1}, s{hi}, 0')
    else:
        a(f's_mov_b32 s{R}, s{lo}')
        a(f's_mov_b32 s{R+1}, s{hi}')
    a(f's_mov_b32 s{R+2}, {nbytes}')
    a(f's_mov_b32 s{R+3}, 0x00020000')

def prologue(a, nwg, endlabel):
    a(f's_cmp_ge_u32 s2, {nwg}')
    a(f's_cbranch_scc1 {endlabel}')
    a('s_load_dwordx16 s[16:31], s[0:1], 0')
    a('s_load_dwordx2 s[32:33], s[0:1], 64')
    a('s_load_dwordx2 s[34:35], s[0:1], 80')
    a('v_lshrrev_b32 v1, 6, v0')
    a('v_and_b32 v0, 63, v0')
    a('s_nop 0')
    a('v_readfirstlane_b32 s3, v1')

def k0():
    a = Asm()
    prologue(a, 64, 'K0_end')
    a('v_and_b32 v2, 15, v0')
    a('v_lshrrev_b32 v3, 4, v0')
    a('s_and_b32 s4, s3, 1')
    a('s_lshr_b32 s5, s3, 1')
    a('s_waitcnt lgkmcnt(0)')
    a('s_cmp_eq_u32 s5, 0')
    a('s_cselect_b32 s36, s26, s28')
    a('s_cselect_b32 s37, s27, s29')
    srd(a, 40, 36, 37, 16384)
    srd(a, 44, 22, 23, 2048 * 1024)
    srd(a, 48, 34, 35, 64 * 2048, WS_KV)
    a('v_lshlrev_b32 v4, 4, v0')
    a('s_lshl_b32 s6, s4, 13')
    a('s_lshl_b32 s7, s5, 14')
    a('s_add_u32 s7, s7, s6')
    a('s_mov_b32 m0, s7')
    a('s_nop 0')
    for i in range(4):
        a(f'buffer_load_dwordx4 v4, s[40:43], s6 offen offset:{i*1024} lds')
    a('s_add_u32 m0, s7, 4096')
    a('s_add_u32 s6, s6, 4096')
    for i in range(4):
        a(f'buffer_load_dwordx4 v4, s[40:43], s6 offen offset:{i*1024} lds')
    a('s_lshl_b32 s8, s2, 5')
    a('s_lshl_b32 s9, s4, 4')
    a('s_add_u32 s8, s8, s9')
    a('v_add_u32 v5, s8, v2')
    a('v_lshlrev_b32 v5, 10, v5')
    a('v_lshl_add_u32 v5, v3, 4, v5')
    for s in range(16):
        a(f'buffer_load_dwordx4 v[{16+4*s}:{19+4*s}], v5, s[44:47], 0 offen offset:{64*s}')
    a('v_lshlrev_b32 v6, 8, v3')
    a('v_lshl_add_u32 v6, v2, 3, v6')
    a('s_lshl_b32 s7, s5, 14')
    a('v_add_u32 v6, s7, v6')
    a('s_waitcnt vmcnt(16)')
    a('s_barrier')
    for s in range(16):
        for e in range(2):
            a(f'ds_read_b64_tr_b16 v[{80+4*s+2*e}:{81+4*s+2*e}], v6 offset:{1024*s+128*e}')
    for r in range(8, 12): a(f'v_mov_b32 v{r}, 0')
    a('s_cmp_eq_u32 s5, 0')
    a('s_cbranch_scc0 K0_v')
    a('s_waitcnt vmcnt(0) lgkmcnt(0)')
    for s in range(16):
        a(f'v_mfma_f32_16x16x32_bf16 v[8:11], v[{80+4*s}:{83+4*s}], v[{16+4*s}:{19+4*s}], v[8:11]')
    a('v_and_b32 v12, 1, v3')
    a('v_lshlrev_b32 v12, 9, v12')
    a('s_lshl_b32 s9, s4, 8')
    a('s_branch K0_st')
    a.label('K0_v')
    a('s_waitcnt vmcnt(0) lgkmcnt(0)')
    for s in range(16):
        a(f'v_mfma_f32_16x16x32_bf16 v[8:11], v[{16+4*s}:{19+4*s}], v[{80+4*s}:{83+4*s}], v[8:11]')
    a('v_and_b32 v12, 1, v3')
    a('v_lshlrev_b32 v12, 8, v12')
    a('s_lshl_b32 s9, s4, 9')
    a('s_add_u32 s9, s9, 1024')
    a.label('K0_st')
    a('v_lshl_add_u32 v12, v2, 4, v12')
    a('v_lshrrev_b32 v13, 1, v3')
    a('v_lshl_add_u32 v12, v13, 3, v12')
    a('s_lshl_b32 s8, s2, 11')
    a('s_add_u32 s8, s8, s9')
    a('s_nop 4')
    a('v_cvt_pk_bf16_f32 v14, v8, v9')
    a('v_cvt_pk_bf16_f32 v15, v10, v11')
    a('buffer_store_dwordx2 v[14:15], v12, s[48:51], s8 offen')
    a.label('K0_end')
    a('s_endpgm')
    a.fix_hazards(); a.fix_hazards(taken=('K0_v',))
    a.check_waits(); a.check_waits(taken=('K0_v',))
    return a, 144

def dma_x_voff(a, vd, vt, rowbase_s, bpar):
    a(f'v_lshrrev_b32 {vt}, 4, v0')
    a(f'v_add_u32 {vt}, {bpar}, {vt}')
    a(f'v_and_b32 {vd}, 7, v0')
    a(f'v_xor_b32 {vd}, {vd}, {vt}')
    a(f'v_lshlrev_b32 {vd}, 4, {vd}')
    a(f'v_lshrrev_b32 {vt}, 3, v0')
    a(f'v_add_u32 {vt}, {rowbase_s}, {vt}')
    a(f'v_lshl_add_u32 {vd}, {vt}, 10, {vd}')

def dma_w_voff(a, vd, vt, pitch_s):
    a(f'v_lshrrev_b32 {vt}, 2, v0')
    a(f'v_and_b32 {vt}, 4, {vt}')
    a(f'v_and_b32 {vd}, 7, v0')
    a(f'v_xor_b32 {vd}, {vd}, {vt}')
    a(f'v_lshlrev_b32 {vd}, 4, {vd}')
    a(f'v_lshrrev_b32 {vt}, 3, v0')
    a(f'v_mul_lo_u32 {vt}, {vt}, {pitch_s}')
    a(f'v_add_u32 {vd}, {vd}, {vt}')

def xread_addrs(a, vds, vt, vt2, base_s):
    a(f'v_and_b32 {vt}, 31, v0')
    a(f'v_lshrrev_b32 {vt2}, 1, {vt}')
    a(f'v_and_b32 {vt2}, 7, {vt2}')
    a(f'v_lshlrev_b32 {vt}, 7, {vt}')
    a(f'v_add_u32 {vt}, {base_s}, {vt}')
    a(f'v_lshrrev_b32 {vds[3]}, 5, v0')
    a(f'v_xor_b32 {vt2}, {vt2}, {vds[3]}')
    for s in range(4):
        a(f'v_xor_b32 {vds[s]}, {2*s}, {vt2}')
        a(f'v_lshl_add_u32 {vds[s]}, {vds[s]}, 4, {vt}')

def wread_addr(a, vd, vt, vt2, hmul, base_s):
    a(f'v_lshrrev_b32 {vt}, 5, v0')
    a(f'v_mul_u32_u24 {vt}, {hmul}, {vt}')
    a(f'v_bfe_u32 {vt2}, v0, 2, 2')
    a(f'v_add_u32 {vt}, {vt}, {vt2}')
    a(f'v_lshlrev_b32 {vd}, 7, {vt}')
    a(f'v_and_b32 {vt2}, 2, {vt2}')
    a(f'v_bfe_u32 {vt}, v0, 4, 1')
    a(f'v_xor_b32 {vt}, {vt}, {vt2}')
    a(f'v_lshl_add_u32 {vd}, {vt}, 5, {vd}')
    a(f'v_and_b32 {vt}, 3, v0')
    a(f'v_lshl_add_u32 {vd}, {vt}, 3, {vd}')
    a(f'v_add_u32 {vd}, {base_s}, {vd}')

def k1():
    a = Asm()
    prologue(a, 256, 'K1_end')
    a('s_and_b32 s4, s2, 7')
    a('s_lshr_b32 s5, s2, 3')
    a('s_waitcnt lgkmcnt(0)')
    srd(a, 40, 16, 17, 2048 * 1024)
    srd(a, 44, 18, 19, 512 * 3072)
    srd(a, 48, 34, 35, 2 << 20, WS_OA)
    CH = 34 * 1024
    BASE = 2048
    a('s_lshl_b32 s6, s5, 6')
    a('s_sub_u32 s6, s6, 16')
    a('s_lshl_b32 s7, s3, 3')
    a('s_add_u32 s7, s6, s7')
    a('s_and_b32 s8, s3, 1')
    a('s_lshl_b32 s8, s8, 2')
    dma_x_voff(a, 'v2', 'v4', 's7', 's8')
    a('v_add_u32 v3, 0x10000, v2')
    a('s_movk_i32 s9, 3072')
    dma_w_voff(a, 'v5', 'v4', 's9')
    a('s_mul_i32 s10, s3, 24576')
    a('s_lshl_b32 s11, s4, 7')
    a('s_add_u32 s10, s10, s11')
    a('s_lshl_b32 s12, s3, 10')
    def issue(c):
        slot = BASE + (c % 4) * CH
        a('s_cmp_lt_u32 s3, 2')
        a(f's_cbranch_scc0 K1_nx{c}')
        a(f's_add_u32 m0, s12, {slot + 8192}')
        a(f's_movk_i32 s13, {c*128}')
        a('buffer_load_dwordx4 v3, s[40:43], s13 offen lds')
        a.label(f'K1_nx{c}')
        a(f's_add_u32 m0, s12, {slot}')
        a(f's_movk_i32 s13, {c*128}')
        a('buffer_load_dwordx4 v2, s[40:43], s13 offen lds')
        for sec in range(3):
            a(f's_add_u32 m0, s12, {slot + 10240 + sec*8192}')
            a(f's_add_u32 s13, s10, {c*64*3072 + sec*1024}')
            a('buffer_load_dwordx4 v5, s[44:47], s13 offen lds')
    for c in range(4): issue(c)
    a('s_add_u32 s14, s3, 1')
    a('s_mul_i32 s15, s14, 43')
    a('s_lshr_b32 s15, s15, 7')
    a('s_mul_i32 s36, s15, 3')
    a('s_sub_u32 s14, s14, s36')
    a('s_lshl_b32 s36, s14, 12')
    xread_addrs(a, ['v6', 'v7', 'v8', 'v9'], 'v4', 'v10', 's36')
    a('s_lshl_b32 s37, s15, 13')
    a(f's_add_u32 s37, s37, {BASE + 10240}')
    wread_addr(a, 'v10', 'v4', 'v11', 8, 's37')
    a('v_xor_b32 v11, 64, v10')
    ACC = 16
    for r in range(ACC, ACC + 32): a(f'v_mov_b32 v{r}, 0')
    FR = 48
    for c in range(8):
        ahead = min(c + 3, 7) - c
        a(f's_waitcnt vmcnt({4*ahead})')
        a('s_barrier')
        so = (c % 4) * CH
        big = so > 40000
        if c % 4 == 2:
            for r in range(6, 12): a(f'v_add_u32 v{r}, {2*CH}, v{r}')
        if c == 4:
            for r in range(6, 12): a(f'v_subrev_u32 v{r}, {2*CH}, v{r}')
        so = (c % 2) * CH
        for s in range(4):
            f = FR + 12 * s
            a(f'ds_read_b128 v[{f}:{f+3}], v{6+s} offset:{so}')
            for ft in range(2):
                for e in range(2):
                    a(f'ds_read_b64_tr_b16 v[{f+4+4*ft+2*e}:{f+5+4*ft+2*e}], v{10+ft} offset:{so + s*2048 + e*512}')
        for s in range(4):
            f = FR + 12 * s
            a(f's_waitcnt lgkmcnt({min(15,5*(3-s))})')
            for ft in range(2):
                a(f'v_mfma_f32_32x32x16_bf16 v[{ACC+16*ft}:{ACC+16*ft+15}], v[{f+4+4*ft}:{f+7+4*ft}], v[{f}:{f+3}], v[{ACC+16*ft}:{ACC+16*ft+15}]')
        if c + 4 < 8:
            a('s_barrier')
            issue(c + 4)
    a('s_barrier')
    a('s_mul_i32 s36, s15, 96')
    a('s_lshl_b32 s37, s14, 5')
    a('s_add_u32 s36, s36, s37')
    a('s_sub_u32 s36, s36, 32')
    a('v_and_b32 v2, 31, v0')
    a('v_add_u32 v2, s36, v2')
    a('v_mul_u32_u24 v2, 272, v2')
    a('v_lshrrev_b32 v3, 5, v0')
    a('v_lshl_add_u32 v2, v3, 4, v2')
    for ft in range(2):
        for i in range(4):
            r = ACC + 16 * ft + 4 * i
            a(f'ds_write_b128 v2, v[{r}:{r+3}] offset:{ft*128 + i*32}')
    a('s_waitcnt lgkmcnt(0)')
    a('s_barrier')
    a('s_cmp_ge_u32 s3, 4')
    a('s_cbranch_scc1 K1_end')
    a('s_and_b32 s14, s3, 1')
    a('s_lshr_b32 s15, s3, 1')
    a('s_lshl_b32 s36, s14, 5')
    a('v_and_b32 v2, 31, v0')
    a('v_add_u32 v2, s36, v2')
    a('v_mul_u32_u24 v4, 272, v2')
    a('v_lshl_add_u32 v4, v3, 6, v4')
    a('s_lshl_b32 s36, s15, 7')
    a('v_add_u32 v4, s36, v4')
    Q = 16; KV = 32; L = 160
    for j in range(4): a(f'ds_read_b128 v[{Q+4*j}:{Q+4*j+3}], v4 offset:{16*j}')
    for w in range(8):
        for j in range(4):
            a(f'ds_read_b128 v[{KV+16*w+4*j}:{KV+16*w+4*j+3}], v4 offset:{82*272 + (7-w)*544 + 16*j}')
    for w in range(8):
        kb = KV + 16 * w
        a(f'v_pk_mul_f32 v[{L+2*w}:{L+2*w+1}], v[{Q}:{Q+1}], v[{kb}:{kb+1}]')
        for j in range(1, 8):
            a(f'v_pk_fma_f32 v[{L+2*w}:{L+2*w+1}], v[{Q+2*j}:{Q+2*j+1}], v[{kb+2*j}:{kb+2*j+1}], v[{L+2*w}:{L+2*w+1}]')
    for w in range(8):
        for j in range(4):
            a(f'ds_read_b128 v[{KV+16*w+4*j}:{KV+16*w+4*j+3}], v4 offset:{178*272 + (7-w)*544 + 16*j}')
    S = 176
    for w in range(8): a(f'v_add_f32 v{S+w}, v{L+2*w}, v{L+2*w+1}')
    a('s_cmp_lg_u32 s5, 0')
    a('s_cbranch_scc1 K1_nomask')
    a(f'v_mov_b32 v5, {f2u(-4e9)}')
    for w in range(1, 8):
        a(f'v_cmp_le_u32 vcc, {2*w}, v2')
        a(f'v_cndmask_b32 v{S+w}, v5, v{S+w}, vcc')
    a.label('K1_nomask')
    a(f'v_max3_f32 v5, v{S}, v{S+1}, v{S+2}')
    a(f'v_max3_f32 v5, v5, v{S+3}, v{S+4}')
    a(f'v_max3_f32 v5, v5, v{S+5}, v{S+6}')
    a(f'v_max_f32 v5, v5, v{S+7}')
    a(f's_mov_b32 s36, {f2u(CEXP)}')
    for w in range(8):
        a(f'v_sub_f32 v{S+w}, v{S+w}, v5')
        a(f'v_mul_f32 v{S+w}, s36, v{S+w}')
    for w in range(8): a(f'v_exp_f32 v{S+w}, v{S+w}')
    a(f'v_add_f32 v5, v{S}, v{S+1}')
    for w in range(2, 8): a(f'v_add_f32 v5, v5, v{S+w}')
    a('v_rcp_f32 v5, v5')
    for w in range(8): a(f'v_mul_f32 v{S+w}, v{S+w}, v5')
    O = 16
    for w in range(8):
        vb = KV + 16 * w
        pr = S + (w & ~1)
        sel = 'op_sel_hi:[1,0,1]' if w % 2 == 0 else 'op_sel:[0,1,0] op_sel_hi:[1,1,1]'
        for j in range(8):
            if w == 0:
                a(f'v_pk_mul_f32 v[{O+2*j}:{O+2*j+1}], v[{vb+2*j}:{vb+2*j+1}], v[{pr}:{pr+1}] op_sel_hi:[1,0]')
            else:
                a(f'v_pk_fma_f32 v[{O+2*j}:{O+2*j+1}], v[{vb+2*j}:{vb+2*j+1}], v[{pr}:{pr+1}], v[{O+2*j}:{O+2*j+1}] {sel}')
    P = 8
    for (dst, q) in ((0, 0), (2, 2), (4, 1), (6, 3)):
        a(f'v_cvt_pk_bf16_f32 v{P+dst}, v{O+4*q}, v{O+4*q+1}')
        a(f'v_cvt_pk_bf16_f32 v{P+dst+1}, v{O+4*q+2}, v{O+4*q+3}')
    a('s_lshl_b32 s36, s5, 1')
    a('s_add_u32 s36, s36, s14')
    a('s_lshl_b32 s36, s36, 15')
    a('s_lshl_b32 s37, s4, 12')
    a('s_add_u32 s36, s36, s37')
    a('s_lshl_b32 s37, s15, 11')
    a('s_add_u32 s36, s36, s37')
    a('v_and_b32 v2, 31, v0')
    a('v_lshlrev_b32 v2, 4, v2')
    a('v_lshl_add_u32 v2, v3, 10, v2')
    a(f'buffer_store_dwordx4 v[{P}:{P+3}], v2, s[48:51], s36 offen')
    a(f'buffer_store_dwordx4 v[{P+4}:{P+7}], v2, s[48:51], s36 offen offset:512')
    a.label('K1_end')
    a('s_endpgm')
    a.check_waits(auto=True)
    a.fix_hazards()
    a.fix_hazards(taken=tuple(f'K1_nx{c}' for c in range(8)) + ('K1_nomask',))
    return a, 184, BASE + 4 * CH

TS = 2064
def k2():
    a = Asm()
    prologue(a, 256, 'K2_end')
    a('s_and_b32 s4, s2, 7')
    a('s_lshr_b32 s5, s2, 3')
    a('s_waitcnt lgkmcnt(0)')
    srd(a, 40, 22, 23, 2048 * 1024)
    srd(a, 44, 24, 25, 512 * 1024)
    srd(a, 48, 34, 35, 2 << 20, WS_OB)
    srd(a, 52, 34, 35, 64 * 2048, WS_KV)
    a('s_lshl_b32 s6, s5, 6')
    a('s_lshl_b32 s7, s3, 3')
    a('s_add_u32 s7, s6, s7')
    a('s_and_b32 s8, s3, 1')
    a('s_lshl_b32 s8, s8, 2')
    dma_x_voff(a, 'v2', 'v4', 's7', 's8')
    a('s_movk_i32 s9, 1024')
    dma_w_voff(a, 'v5', 'v4', 's9')
    a('s_lshl_b32 s10, s3, 13')
    a('s_lshl_b32 s11, s4, 7')
    a('s_add_u32 s10, s10, s11')
    a('s_lshl_b32 s12, s3, 10')
    for c in range(8):
        a(f's_add_u32 m0, s12, {c*16384}')
        a(f's_movk_i32 s13, {c*128}')
        a('buffer_load_dwordx4 v2, s[40:43], s13 offen lds')
        a(f's_add_u32 m0, s12, {c*16384 + 8192}')
        a(f's_add_u32 s13, s10, {c*65536}')
        a('buffer_load_dwordx4 v5, s[44:47], s13 offen lds')
    a('s_and_b32 s14, s3, 1')
    a('s_bfe_u32 s15, s3, 0x10001')
    a('s_lshr_b32 s38, s3, 2')
    a('s_lshl_b32 s36, s15, 12')
    xread_addrs(a, ['v6', 'v7', 'v8', 'v9'], 'v4', 'v10', 's36')
    a('s_movk_i32 s37, 8192')
    wread_addr(a, 'v10', 'v4', 'v11', 8, 's37')
    a('s_lshl_b32 s37, s14, 6')
    a('v_xor_b32 v10, s37, v10')
    ACC = 16
    for r in range(ACC, ACC + 16): a(f'v_mov_b32 v{r}, 0')
    FR = 48
    for c in range(8):
        a(f's_waitcnt vmcnt({2*(7-c)})')
        a('s_barrier')
        if c == 4:
            for r in range(6, 11): a(f'v_add_u32 v{r}, 0x10000, v{r}')
        so = (c % 4) * 16384
        for s in range(4):
            f = FR + 8 * s
            a(f'ds_read_b128 v[{f}:{f+3}], v{6+s} offset:{so}')
            for e in range(2):
                a(f'ds_read_b64_tr_b16 v[{f+4+2*e}:{f+5+2*e}], v10 offset:{so + s*2048 + e*512}')
        for s in range(4):
            f = FR + 8 * s
            a(f's_waitcnt lgkmcnt({3*(3-s)})')
            a(f'v_mfma_f32_32x32x16_bf16 v[{ACC}:{ACC+15}], v[{f+4}:{f+7}], v[{f}:{f+3}], v[{ACC}:{ACC+15}]')
    a('s_barrier')
    a('v_lshlrev_b32 v2, 4, v0')
    a('s_lshr_b32 s6, s3, 1')
    a(f's_mul_i32 s7, s6, {TS}')
    a('s_lshl_b32 s8, s14, 10')
    a('s_add_u32 s7, s7, s8')
    a('s_lshl_b32 s6, s3, 10')
    for n in range(16):
        a(f's_add_u32 m0, s7, {n*4*TS}')
        a(f's_add_u32 s13, s6, {n*8192}')
        a('buffer_load_dwordx4 v2, s[52:55], s13 offen lds')
    a('v_mov_b32 v32, 0x3f803f80')
    for r in range(33, 36): a(f'v_mov_b32 v{r}, v32')
    a(f'v_mul_u32_u24 v3, {TS}, v0')
    a('ds_write_b128 v3, v[32:35] offset:2048')
    QA, QB = 8, 12
    a(f's_mov_b32 s36, {f2u(CEXP)}')
    for r in range(16): a(f'v_mul_f32 v{ACC+r}, s36, v{ACC+r}')
    for r in range(8): a(f'v_cvt_pk_bf16_f32 v{QA+r}, v{ACC+2*r}, v{ACC+2*r+1}')
    S0, S1, CA, CB, OA, OB = 16, 32, 48, 64, 80, 96
    P = 112
    KF = [120, 124]
    VF = [[128, 132], [136, 140]]
    a(f's_mul_i32 s7, s38, {TS}')
    a('v_add_u32 v2, s7, v2')
    a('v_and_b32 v5, 15, v0')
    a('v_lshlrev_b32 v5, 4, v5')
    a('v_lshrrev_b32 v6, 5, v0')
    a('v_lshl_add_u32 v5, v6, 8, v5')
    a('v_add_u32 v3, 1024, v5')
    a('v_add_u32 v4, 1536, v5')
    a('v_and_b32 v6, 16, v0')
    a('v_cmp_eq_u32 vcc, 0, v6')
    a('v_mov_b32 v6, 2048')
    a('v_cndmask_b32 v3, v6, v3, vcc')
    a('v_cndmask_b32 v4, v6, v4, vcc')
    a('v_add_u32 v3, s7, v3')
    a('v_add_u32 v4, s7, v4')
    a('v_lshlrev_b32 v5, 4, v0')
    a('s_waitcnt vmcnt(0) lgkmcnt(0)')
    a('s_barrier')
    a(f'ds_read_b128 v[{KF[0]}:{KF[0]+3}], v5')
    a('s_waitcnt lgkmcnt(0)')
    a(f'v_mfma_f32_32x32x16_bf16 v[{S0}:{S0+15}], v[{KF[0]}:{KF[0]+3}], v[{QA}:{QA+3}], 0')
    a(f'v_mfma_f32_32x32x16_bf16 v[{S1}:{S1+15}], v[{KF[0]}:{KF[0]+3}], v[{QB}:{QB+3}], 0')
    for (S, C) in ((S0, CA), (S1, CB)):
        a(f'v_max3_f32 v{C}, v{S}, v{S+1}, v{S+2}')
        for r in range(3, 15, 2): a(f'v_max3_f32 v{C}, v{C}, v{S+r}, v{S+r+1}')
        a(f'v_max_f32 v{C}, v{C}, v{S+15}')
        a(f'v_mov_b32 v{C+1}, v{C}')
        a(f'v_permlane32_swap_b32 v{C}, v{C+1}')
        a(f'v_max_f32 v{C}, v{C}, v{C+1}')
        a(f'v_sub_f32 v{C}, {f2u(-40.0)}, v{C}')
        for r in range(1, 16): a(f'v_mov_b32 v{C+r}, v{C}')
    a('s_mov_b32 s39, 0')
    a.label('K2_main')
    for r in range(32): a(f'v_mov_b32 v{OA+r}, 0')
    for r in range(8): a(f'v_mov_b32 v{P+r}, 0')
    for r in range(4): a(f'v_mov_b32 v{VF[1][1]+r}, 0')
    for r in (14, 15): a(f'v_mov_b32 v{S1+r}, 0')
    a('v_mov_b32 v144, v2'); a('v_mov_b32 v145, v3'); a('v_mov_b32 v146, v4')
    a(f'ds_read_b128 v[{KF[0]}:{KF[0]+3}], v144')
    a(f'ds_read_b128 v[{VF[0][0]}:{VF[0][0]+3}], v145')
    a(f'ds_read_b128 v[{VF[0][1]}:{VF[0][1]+3}], v146')
    a('s_waitcnt lgkmcnt(0)')
    a(f'v_mfma_f32_32x32x16_bf16 v[{S0}:{S0+15}], v[{KF[0]}:{KF[0]+3}], v[{QA}:{QA+3}], v[{CA}:{CA+15}]')
    a('s_nop 7'); a('s_nop 2')
    UN = 4
    a(f's_mov_b32 s13, {32 // UN}')
    a.label('K2_loop')
    def tile(S, Sn, qk, pvprev, pv0, loads, wait=None):
        ex = [f'v_exp_f32 v{S+i}, v{S+i}' for i in range(16)]
        cv = [f'v_cvt_pk_bf16_f32 v{P+i}, v{S+2*i}, v{S+2*i+1}' for i in range(8)]
        cvp = f'v_cvt_pk_bf16_f32 v{P+7}, v{Sn+14}, v{Sn+15}'
        seq = [ex[0], cvp] + ([wait] if wait else []) + [qk] + ex[1:3] + [cv[0]] + ex[3:5] + [cv[1]] + [pvprev] + loads + ex[5:7] + [cv[2]] + ex[7:9] + [cv[3]] + ex[9:11] + [pv0] + [cv[4]] + ex[11:13] + [cv[5]] + ex[13:15] + [cv[6]] + ex[15:16]
        for s in seq: a(s)
    def mf(D, A, B, C): return f'v_mfma_f32_32x32x16_bf16 v[{D}:{D+15}], v[{A}:{A+3}], v[{B}:{B+3}], v[{C}:{C+15}]'
    for t in range(UN):
        cur, nxt = t % 2, (t + 1) % 2
        off = (t + 1) * 2 * TS
        loads = [f'ds_read_b128 v[{KF[nxt]}:{KF[nxt]+3}], v144 offset:{off}',
                 f'ds_read_b128 v[{VF[nxt][0]}:{VF[nxt][0]+3}], v145 offset:{off}',
                 f'ds_read_b128 v[{VF[nxt][1]}:{VF[nxt][1]+3}], v146 offset:{off}']
        tile(S0, S1, mf(S1, KF[cur], QB, CB), mf(OB, VF[nxt][1], P + 4, OB), mf(OA, VF[cur][0], P, OA), loads)
        tile(S1, S0, mf(S0, KF[nxt], QA, CA), mf(OA, VF[cur][1], P + 4, OA), mf(OB, VF[cur][0], P, OB), [], wait='s_waitcnt lgkmcnt(0)')
    for r in range(144, 147): a(f'v_add_u32 v{r}, {UN*2*TS}, v{r}')
    a('s_sub_u32 s13, s13, 1')
    a('s_cmp_lg_u32 s13, 0')
    a('s_cbranch_scc1 K2_loop')
    a(f'v_cvt_pk_bf16_f32 v{P+7}, v{S1+14}, v{S1+15}')
    a(mf(OB, VF[(UN-1) % 2][1], P + 4, OB))
    XCH = 64 * TS + TS * 2
    XCH = (XCH + 15) // 16 * 16
    a('s_cmp_eq_u32 s38, 0')
    a('s_cbranch_scc1 K2_g0')
    for r in range(9): a(f'v_swap_b32 v{OA+r}, v{OB+r}')
    a.label('K2_g0')
    a('v_lshlrev_b32 v5, 4, v0')
    a('s_xor_b32 s6, s3, 4')
    a('s_mul_i32 s6, s6, 3072')
    a('s_mul_i32 s7, s3, 3072')
    a(f's_add_u32 s6, s6, {XCH}')
    a(f's_add_u32 s7, s7, {XCH}')
    a('v_add_u32 v6, s6, v5')
    a('v_add_u32 v7, s7, v5')
    a(f'ds_write_b128 v6, v[{OB}:{OB+3}]')
    a(f'ds_write_b128 v6, v[{OB+4}:{OB+7}] offset:1024')
    a(f'ds_write_b32 v6, v{OB+8} offset:2048')
    a('s_waitcnt lgkmcnt(0)')
    a('s_barrier')
    a(f'ds_read_b128 v[{OB}:{OB+3}], v7')
    a(f'ds_read_b128 v[{OB+4}:{OB+7}], v7 offset:1024')
    a(f'ds_read_b32 v{OB+8}, v7 offset:2048')
    a('s_waitcnt lgkmcnt(0)')
    for r in range(9): a(f'v_add_f32 v{OA+r}, v{OA+r}, v{OB+r}')
    a(f'v_rcp_f32 v{OB}, v{OA+8}')
    for r in range(8): a(f'v_mul_f32 v{OA+r}, v{OA+r}, v{OB}')
    for r in range(4): a(f'v_cvt_pk_bf16_f32 v{P+r}, v{OA+2*r}, v{OA+2*r+1}')
    a('s_lshl_b32 s36, s5, 1')
    a('s_add_u32 s36, s36, s15')
    a('s_lshl_b32 s36, s36, 15')
    a('s_lshl_b32 s37, s4, 12')
    a('s_add_u32 s36, s36, s37')
    a('s_lshl_b32 s37, s14, 11')
    a('s_add_u32 s36, s36, s37')
    a('s_lshl_b32 s37, s38, 10')
    a('s_add_u32 s36, s36, s37')
    a(f'buffer_store_dwordx4 v[{P}:{P+3}], v5, s[48:51], s36 offen')
    a.label('K2_end')
    a('s_endpgm')
    a.check_waits()
    a.fix_hazards(verbose=True)
    a.fix_hazards(taken=('K2_g0',), verbose=True)
    return a, 148, XCH + 8 * 3072

def k3():
    a = Asm()
    prologue(a, 256, 'K3_end')
    a('s_and_b32 s4, s2, 3')
    a('s_bfe_u32 s6, s2, 0x10002')
    a('s_lshr_b32 s5, s2, 3')
    a('s_waitcnt lgkmcnt(0)')
    a('s_cmp_eq_u32 s6, 0')
    a('s_cselect_b32 s36, s20, s30')
    a('s_cselect_b32 s37, s21, s31')
    srd(a, 44, 36, 37, 512 * 1024)
    srd(a, 40, 34, 35, 4 << 20, WS_OA)
    srd(a, 48, 32, 33, 4 << 20)
    CH = 24576
    a('s_movk_i32 s9, 1024')
    dma_w_voff(a, 'v5', 'v4', 's9')
    a('v_lshlrev_b32 v2, 4, v0')
    a('s_lshl_b32 s10, s3, 13')
    a('s_lshl_b32 s11, s4, 8')
    a('s_add_u32 s10, s10, s11')
    a('s_and_b32 s14, s3, 1')
    a('s_lshr_b32 s15, s3, 1')
    a('s_lshl_b32 s7, s5, 1')
    a('s_add_u32 s7, s7, s14')
    a('s_lshl_b32 s7, s7, 15')
    a('s_lshl_b32 s8, s6, 21')
    a('s_add_u32 s7, s7, s8')
    a('s_lshl_b32 s8, s15, 10')
    a('s_add_u32 s7, s7, s8')
    a('s_lshl_b32 s12, s3, 10')
    def issue(c):
        slot = (c % 6) * CH
        a(f's_add_u32 m0, s12, {slot}')
        a(f's_add_u32 s13, s7, {c*4096}')
        a('buffer_load_dwordx4 v2, s[40:43], s13 offen lds')
        for sec in range(2):
            a(f's_add_u32 m0, s12, {slot + 8192 + sec*8192}')
            a(f's_add_u32 s13, s10, {c*65536 + sec*128}')
            a('buffer_load_dwordx4 v5, s[44:47], s13 offen lds')
    for c in range(6): issue(c)
    a('s_lshl_b32 s36, s14, 10')
    a('v_add_u32 v6, s36, v2')
    a('s_lshr_b32 s37, s15, 1')
    a('s_lshl_b32 s37, s37, 13')
    a('s_add_u32 s37, s37, 8192')
    wread_addr(a, 'v10', 'v4', 'v11', 4, 's37')
    a('s_and_b32 s37, s15, 1')
    a('s_lshl_b32 s37, s37, 6')
    a('v_xor_b32 v10, s37, v10')
    ACC = 16
    for r in range(ACC, ACC + 16): a(f'v_mov_b32 v{r}, 0')
    FR = 48
    issued = 6
    for c in range(8):
        a(f's_waitcnt vmcnt({3*(issued-1-c)})')
        a('s_barrier')
        if c in (2, 4):
            for r in (6, 10): a(f'v_add_u32 v{r}, {2*CH}, v{r}')
        if c == 6:
            for r in (6, 10): a(f'v_subrev_u32 v{r}, {4*CH}, v{r}')
        if c in (1, 2):
            issue(issued); issued += 1
        so = (c % 2) * CH
        for s in range(4):
            f = FR + 8 * s
            a(f'ds_read_b128 v[{f}:{f+3}], v6 offset:{so + s*2048}')
            for e in range(2):
                a(f'ds_read_b64_tr_b16 v[{f+4+2*e}:{f+5+2*e}], v10 offset:{so + s*2048 + e*1024}')
        for s in range(4):
            f = FR + 8 * s
            a(f's_waitcnt lgkmcnt({3*(3-s)})')
            a(f'v_mfma_f32_32x32x16_bf16 v[{ACC}:{ACC+15}], v[{f+4}:{f+7}], v[{f}:{f+3}], v[{ACC}:{ACC+15}]')
    P = 32
    for r in range(8): a(f'v_cvt_pk_bf16_f32 v{P+r}, v{ACC+2*r}, v{ACC+2*r+1}')
    for pr in range(2):
        a(f'v_permlane32_swap_b32 v{P+4*pr}, v{P+4*pr+2}')
        a(f'v_permlane32_swap_b32 v{P+4*pr+1}, v{P+4*pr+3}')
    a('v_and_b32 v2, 31, v0')
    a('v_lshlrev_b32 v2, 11, v2')
    a('v_lshrrev_b32 v3, 5, v0')
    a('v_lshl_add_u32 v2, v3, 4, v2')
    a('s_lshl_b32 s36, s5, 17')
    a('s_lshl_b32 s37, s14, 16')
    a('s_add_u32 s36, s36, s37')
    a('s_lshl_b32 s37, s6, 10')
    a('s_add_u32 s36, s36, s37')
    a('s_lshl_b32 s37, s4, 8')
    a('s_add_u32 s36, s36, s37')
    a('s_lshl_b32 s37, s15, 6')
    a('s_add_u32 s36, s36, s37')
    a(f'buffer_store_dwordx4 v[{P}:{P+3}], v2, s[48:51], s36 offen')
    a(f'buffer_store_dwordx4 v[{P+4}:{P+7}], v2, s[48:51], s36 offen offset:32')
    a.label('K3_end')
    a('s_endpgm')
    a.check_waits()
    a.fix_hazards()
    return a, 80, 6 * CH

def main(out):
    a0, v0 = k0()
    a1, v1, l1 = k1()
    a2, v2, l2 = k2()
    a3, v3, l3 = k3()
    s = f"""; @launch kernel=kv_kernel grid=(64,1,1) block=(256,1,1) lds=32768
; @launch kernel=aqkv_kernel grid=(256,1,1) block=(512,1,1) lds={l1}
; @launch kernel=attn_kernel grid=(256,1,1) block=(512,1,1) lds={l2}
; @launch kernel=oproj_kernel grid=(256,1,1) block=(512,1,1) lds={l3}
.amdgcn_target "amdgcn-amd-amdhsa--gfx950"
"""
    for n, a in (('kv_kernel', a0), ('aqkv_kernel', a1), ('attn_kernel', a2), ('oproj_kernel', a3)):
        s += khead(n) + a.text()
    for n, v in (('kv_kernel', v0), ('aqkv_kernel', v1), ('attn_kernel', v2), ('oproj_kernel', v3)):
        s += kd(n, v)
    open(out, 'w').write(s)
    print('lds', l1, l2, l3)
main(sys.argv[1] if len(sys.argv) > 1 else 'cdna_kernels/' + NAME + '.s')
```

```python
import sys, subprocess
def wrap(name, body, iters, nvgpr=128, pre="", wpg=4):
    return f""".amdgcn_target "amdgcn-amd-amdhsa--gfx950"
.text
.globl {name}
.p2align 8
.type {name},@function
{name}:
  s_load_dwordx4 s[4:7], s[0:1], 0
  v_lshrrev_b32 v1, 6, v0
  s_nop 1
  v_readfirstlane_b32 s21, v1
  v_and_b32 v0, 63, v0
  v_cvt_f32_u32 v2, v0
  v_mul_f32 v2, 0xbc23d70a, v2
""" + "".join(f"  v_mov_b32 v{i}, v2\n" for i in range(3, nvgpr)) + pre + f"""
  s_waitcnt lgkmcnt(0)
  s_barrier
  s_memtime s[8:9]
  s_memrealtime s[10:11]
  s_waitcnt lgkmcnt(0)
  s_mov_b32 s20, {iters}
.p2align 6
L_loop_{name}:
{body}
  s_sub_u32 s20, s20, 1
  s_cmp_lg_u32 s20, 0
  s_cbranch_scc1 L_loop_{name}
  s_nop 15
  s_nop 15
  s_memtime s[12:13]
  s_memrealtime s[14:15]
  s_waitcnt lgkmcnt(0)
  s_sub_u32 s12, s12, s8
  s_subb_u32 s13, s13, s9
  s_sub_u32 s14, s14, s10
  s_subb_u32 s15, s15, s11
  s_getreg_b32 s13, hwreg(HW_REG_HW_ID)
  s_getreg_b32 s15, hwreg(HW_REG_XCC_ID)
  s_mul_i32 s22, s2, {wpg}
  s_add_u32 s22, s22, s21
  s_lshl_b32 s22, s22, 4
  v_mov_b32 v4, s12
  v_mov_b32 v5, s13
  v_mov_b32 v6, s14
  v_mov_b32 v7, s15
  v_mov_b32 v8, s22
  v_cmp_eq_u32 vcc, 0, v0
  s_and_saveexec_b64 s[16:17], vcc
  global_store_dwordx4 v8, v[4:7], s[4:5]
  s_waitcnt vmcnt(0)
  s_endpgm
.section .rodata,"a"
.p2align 6
.amdhsa_kernel {name}
  .amdhsa_next_free_vgpr {nvgpr}
  .amdhsa_next_free_sgpr 32
  .amdhsa_accum_offset {nvgpr}
  .amdhsa_group_segment_fixed_size 0
  .amdhsa_kernarg_size 16
  .amdhsa_user_sgpr_count 2
  .amdhsa_user_sgpr_kernarg_segment_ptr 1
  .amdhsa_system_sgpr_workgroup_id_x 1
.end_amdhsa_kernel
.amdgpu_metadata
---
amdhsa.version: [1, 2]
amdhsa.kernels:
  - .name: {name}
    .symbol: {name}.kd
    .kernarg_segment_size: 16
    .kernarg_segment_align: 8
    .group_segment_fixed_size: 0
    .private_segment_fixed_size: 0
    .wavefront_size: 64
    .sgpr_count: 32
    .vgpr_count: {nvgpr}
    .max_flat_workgroup_size: 1024
    .args:
      - {{.name: o, .size: 8, .offset: 0, .value_kind: global_buffer, .address_space: global}}
      - {{.name: i, .size: 8, .offset: 8, .value_kind: global_buffer, .address_space: global}}
...
.end_amdgpu_metadata
"""
def build(name, body, iters, **kw):
    src = wrap(name, body, iters, **kw)
    open(f"{name}.s","w").write(src)
    r = subprocess.run(["clang","-x","assembler","-target","amdgcn-amd-amdhsa","-mcpu=gfx950",f"{name}.s","-o",f"{name}.co"],capture_output=True,text=True)
    if r.returncode: print(r.stderr); sys.exit(1)
```

```python
from mb import build as _b
S0,S1,C,O,P,Q=16,32,48,64,80,92
NK=6
KF=[128+12*i for i in range(NK)]
def mf(D,A,B,Cc): return f"  v_mfma_f32_32x32x16_bf16 v[{D}:{D+15}], v[{A}:{A+3}], v[{B}:{B+3}], "+(f"v[{Cc}:{Cc+15}]" if Cc is not None else "0")
def m16(D,A,B,Cc): return f"  v_mfma_f32_16x16x32_bf16 v[{D}:{D+3}], v[{A}:{A+3}], v[{B}:{B+3}], v[{Cc}:{Cc+3}]"
def tile(S,Sn,k,var):
    qk=mf(Sn,KF[k],Q,C); pv0=mf(O,KF[k]+4,P,O); pv1=mf(O,KF[k]+8,P+4,O)
    if var=='pv16': pv0=m16(O,KF[k],P,O); pv1=m16(O+4,KF[k],P+4,O+4)
    if var=='nopv': pv0=pv1='  s_nop 0'
    if var=='qk16': qk="\n".join(m16(Sn+4*i,KF[k]+4,Q,C) for i in range(4))
    ex=[f"  v_exp_f32 v{S+i}, v{S+i}" for i in range(16)]
    cv=[f"  v_cvt_pk_bf16_f32 v{P+i}, v{S+2*i}, v{S+2*i+1}" for i in range(8)]
    cvp=f"  v_cvt_pk_bf16_f32 v{P+7}, v{Sn+14}, v{Sn+15}"
    if var=='perm':
        cv=[f"  v_perm_b32 v{P+i}, v{S+2*i+1}, v{S+2*i}, s24" for i in range(8)]
        cvp=f"  v_perm_b32 v{P+7}, v{Sn+15}, v{Sn+14}, s24"
    if var=='nocvt':
        cv=["  s_nop 0"]*8; cvp="  s_nop 0"
    seq=[ex[0],cvp,qk]+ex[1:3]+[cv[0]]+ex[3:5]+[cv[1]]+[pv1]+ex[5:7]+[cv[2]]+ex[7:9]+[cv[3]]+ex[9:11]+[pv0]+[cv[4]]+ex[11:13]+[cv[5]]+ex[13:15]+[cv[6]]+ex[15:16]
    return "\n".join(seq)
def pre(var):
    p=["  s_waitcnt lgkmcnt(0)","  v_lshlrev_b32 v1, 4, v0","  s_mov_b32 s24, 0x07060302"]
    for i in range(NK*3): p.append(f"  global_load_dwordx4 v[{128+4*i}:{131+4*i}], v1, s[6:7] offset:{(i%4)*1024}\n  v_add_u32 v1, 1024, v1")
    p.append(f"  global_load_dwordx4 v[{Q}:{Q+3}], v1, s[6:7]")
    p.append("  s_waitcnt vmcnt(0)")
    for i in range(4): p.append(f"  v_add_u32 v{Q+i}, 0x02000200, v{Q+i}")
    cval = {'c40':'0xc2200000','c126':'0xc2fc0000','c300':'0xc3960000'}.get(var,'0xc3190000')
    for i in range(16): p.append(f"  v_mov_b32 v{C+i}, {cval}")
    p += ["  s_mov_b32 exec_lo, 0xffff0000","  s_mov_b32 exec_hi, 0xffff0000"]
    for k in range(NK):
        for r in range(8): p.append(f"  v_mov_b32 v{KF[k]+4+r}, 0x3f803f80")
    p += ["  s_mov_b32 exec_lo, 0xffee0000","  s_mov_b32 exec_hi, 0xffee0000"]
    for k in range(NK):
        for r in range(8): p.append(f"  v_mov_b32 v{KF[k]+4+r}, 0")
    p.append("  s_mov_b64 exec, -1")
    for i in range(16): p.append(f"  v_mov_b32 v{O+i}, 0")
    return "\n".join(p)+"\n"
VARS=('base','c40','c126','c300','perm','nocvt','pv16','nopv','qk16')
for var in VARS:
    body="\n".join(tile(S0,S1,k,var)+"\n"+tile(S1,S0,k,var) for k in range(NK))
    _b(f"en_{var}", body, 6, wpg=8, pre=pre(var), nvgpr=256)
```
